```python
import torch

def _softmax(x, axis=-1):
    return torch.softmax(x, dim=axis)
def _gelu(x):
    return torch.nn.functional.gelu(x, approximate="tanh")
def _silu(x):
    return torch.nn.functional.silu(x)
def _sigmoid(x):
    return torch.sigmoid(x)
def _layernorm(x, axis=-1, eps=1e-5):
    m = x.mean(dim=axis, keepdim=True)
    v = x.var(dim=axis, keepdim=True, unbiased=False)
    return (x - m) / torch.sqrt(v + eps)
def _scatter_add(tgt, idx, src, axis=0):
    return tgt.clone().index_add_(axis, idx, src)
def _segment_sum(src, seg, n):
    out = torch.zeros((n,) + src.shape[1:], dtype=src.dtype)
    return out.index_add_(0, seg, src)
def _pad(x, pw):
    flat = tuple(v for pair in reversed(pw) for v in pair)
    return torch.nn.functional.pad(x, flat)

kernel_name = 'parallel_sum__linear_kernel_hedgehog__moe_arch_mod__prompt'

def setup_inputs():

    _w = (lambda a: (lambda t: t.to(torch.bfloat16) if t.is_floating_point() else t)(torch.as_tensor(a)))
    def _A_setup():
        B, S, D, H = 1, 2048, 576, 32
        Dh = D // H
        return {
            "x": _w((lambda *s: torch.randn(*s, dtype=torch.bfloat16) * 0.05)(B, S, D)),
            "wqkv": _w((lambda *s: torch.randn(*s, dtype=torch.bfloat16) * 0.4)(D, 3 * D)),
            "w_phi": _w((lambda *s: torch.randn(*s, dtype=torch.bfloat16) * 0.4)(H, Dh, Dh) * (Dh ** -0.5)),
            "wo": _w((lambda *s: torch.randn(*s, dtype=torch.bfloat16) * 0.1)(D, D)),
        }
    _A_in = _A_setup()

    def _B_setup():
        B, S, D, F, C = 1, 2048, 576, 4608, 1
        return {
            "x": _w((lambda *s: torch.randn(*s, dtype=torch.bfloat16) * 0.05)(B, S, D)),
            "w_r": _w((lambda *s: torch.randn(*s, dtype=torch.bfloat16) * 0.05)(D)),
            "w_gate": _w((lambda *s: torch.randn(*s, dtype=torch.bfloat16) * 0.05)(D, F)),
            "w_up": _w((lambda *s: torch.randn(*s, dtype=torch.bfloat16) * 0.05)(D, F)),
            "w_down": _w((lambda *s: torch.randn(*s, dtype=torch.bfloat16) * 0.05)(F, D)),
        }
    _B_in = _B_setup()

    return {
        "A_x": _A_in["x"],
        "A_wqkv": _A_in["wqkv"],
        "A_w_phi": _A_in["w_phi"],
        "A_wo": _A_in["wo"],
        "B_x": _B_in["x"],
        "B_w_r": _B_in["w_r"],
        "B_w_gate": _B_in["w_gate"],
        "B_w_up": _B_in["w_up"],
        "B_w_down": _B_in["w_down"],
    }

def reference(A_x, A_wqkv, A_w_phi, A_wo, B_x, B_w_r, B_w_gate, B_w_up, B_w_down):
    def _A_ref(x, wqkv, w_phi, wo):
        B, S, D = x.shape
        H = 32; Dh = D // H
        qkv = (lambda x, *d: x.permute(*d))((x @ wqkv).reshape(B, S, 3, H, Dh), 2, 0, 3, 1, 4)
        q, k, v = qkv[0], qkv[1], qkv[2]
        pq = torch.einsum("bhsd,hdf->bhsf", q, w_phi)
        pk = torch.einsum("bhsd,hdf->bhsf", k, w_phi)
        phi_q = torch.concatenate([_softmax(pq, axis=-1), _softmax(-pq, axis=-1)], axis=-1)
        phi_k = torch.concatenate([_softmax(pk, axis=-1), _softmax(-pk, axis=-1)], axis=-1)
        kv = torch.einsum("bhsf,bhsd->bhfd", phi_k, v)
        z  = torch.einsum("bhsf->bhf", phi_k)
        num = torch.einsum("bhqf,bhfd->bhqd", phi_q, kv)
        den = torch.einsum("bhqf,bhf->bhq", phi_q, z)[..., None] + 1e-6
        o = num / den
        return (lambda x, *d: x.permute(*d))(o, 0, 2, 1, 3).reshape(B, S, D) @ wo

    def _B_ref(x, w_r, w_gate, w_up, w_down):
        B, S, D = x.shape
        C = 1
        r = x @ w_r
        idx = torch.argsort(-r, axis=-1)[:, :C]
        idx_e = (lambda x, n, axis: torch.repeat_interleave(x, n, dim=axis))(idx.reshape(B, C, 1), D, axis=2)
        x_sel = (lambda x, i, axis: torch.take_along_dim(x, i, dim=axis))(x, idx_e, axis=1)
        g = _silu(x_sel @ w_gate)
        u = x_sel @ w_up
        y = (g * u) @ w_down
        r_sel = _sigmoid((lambda x, i, axis: torch.take_along_dim(x, i, dim=axis))(r, idx, axis=1))
        y = y * r_sel.reshape(B, C, 1)
        b_off = (torch.arange(B) * S).reshape(B, 1)
        flat_idx = (idx + b_off).reshape(B * C)
        zero = (x * 0.0).reshape(B * S, D)
        upd = _scatter_add(zero, flat_idx, y.reshape(B * C, D), axis=0)
        return x + upd.reshape(B, S, D)

    x = A_x
    xn = _layernorm(x, axis=-1)
    return x + _A_ref(xn, A_wqkv, A_w_phi, A_wo) + _B_ref(xn, B_w_r, B_w_gate, B_w_up, B_w_down)
```

```python
import sys
NAME = "parallel_sum__linear_kernel_hedgehog__moe_arch_mod__prompt"
extra_empty = int(sys.argv[2]) if len(sys.argv) > 2 else 0

XN   = 0
R    = XN + 2048*576*4
QKV  = R + 2048*4
PHI  = QKV + 2048*1728*4
KV   = PHI + 2048*64*36*4
IDX  = KV + 32*36*19*4
HH   = IDX + 256
Y    = HH + 4608*4
O    = Y + 576*4
WSEND= O + 2048*576*4

out = []
def e(s): out.append(s)

def srd(base, ptr, nbytes):
    e(f"  s_mov_b32 s{base}, s{ptr}")
    e(f"  s_mov_b32 s{base+1}, s{ptr+1}")
    e(f"  s_mov_b32 s{base+2}, {nbytes}")
    e(f"  s_mov_b32 s{base+3}, 0x00020000")

def ws_srd(base, off, nbytes):
    e(f"  s_add_u32 s{base}, s22, {off}")
    e(f"  s_addc_u32 s{base+1}, s23, 0")
    e(f"  s_mov_b32 s{base+2}, {nbytes}")
    e(f"  s_mov_b32 s{base+3}, 0x00020000")

kernels = []
def begin(name, grid, block, lds=0):
    kernels.append((name, grid, block, lds))
    e(f".globl {name}")
    e(".p2align 8")
    e(f".type {name},@function")
    e(f"{name}:")
    e(f"  s_cmp_ge_u32 s2, {grid}")
    e(f"  s_cbranch_scc1 {name}_end")
    e("  s_load_dwordx16 s[4:19], s[0:1], 0")
    e("  s_load_dwordx4 s[20:23], s[0:1], 64")
    e("  s_load_dwordx2 s[24:25], s[0:1], 80")
    e("  s_load_dwordx2 s[26:27], s[0:1], 88")
    e("  s_waitcnt lgkmcnt(0)")
    e("  s_mov_b32 s28, s22")
    e("  s_mov_b32 s29, s23")
    e("  s_mov_b32 s22, s26")
    e("  s_mov_b32 s23, s27")
def end(name):
    e(f"{name}_end:")
    e("  s_endpgm")

def wave_sum(v, tmp):
    for off in (0x041F,0x081F,0x101F,0x201F,0x401F):
        e(f"  ds_swizzle_b32 v{tmp}, v{v} offset:{off}")
        e("  s_waitcnt lgkmcnt(0)")
        e(f"  v_add_f32 v{v}, v{v}, v{tmp}")
    e("  s_nop 1")
    e(f"  v_readlane_b32 s60, v{v}, 0")
    e(f"  v_readlane_b32 s61, v{v}, 32")
    e("  s_nop 3")
    e(f"  v_mov_b32 v{v}, s60")
    e(f"  v_add_f32 v{v}, s61, v{v}")

e(".amdgcn_target \"amdgcn-amd-amdhsa--gfx950\"")
e(".text")

begin("ka_kernel", 2048, 64)
srd(32, 4, 2048*576*2)
srd(36, 14, 576*2)
ws_srd(40, XN, 2048*576*4)
ws_srd(44, R, 2048*4)
e("  s_mul_i32 s50, s2, 1152")
e("  v_lshlrev_b32 v1, 1, v0")
e("  v_add_u32 v2, s50, v1")
for j in range(9):
    e(f"  buffer_load_ushort v{10+j}, v2, s[32:35], 0 offen offset:{128*j}")
    e(f"  buffer_load_ushort v{20+j}, v1, s[36:39], 0 offen offset:{128*j}")
e("  s_waitcnt vmcnt(0)")
for j in range(9):
    e(f"  v_lshlrev_b32 v{10+j}, 16, v{10+j}")
    e(f"  v_lshlrev_b32 v{20+j}, 16, v{20+j}")
e("  v_mov_b32 v3, v10")
for j in range(1,9): e(f"  v_add_f32 v3, v3, v{10+j}")
wave_sum(3, 4)
e("  s_mov_b32 s51, 0x3ae38e39")
e("  v_mul_f32 v3, s51, v3")
for j in range(9): e(f"  v_sub_f32 v{10+j}, v{10+j}, v3")
e("  v_mul_f32 v5, v10, v10")
for j in range(1,9): e(f"  v_fmac_f32 v5, v{10+j}, v{10+j}")
wave_sum(5, 4)
e("  v_mul_f32 v5, s51, v5")
e("  v_add_f32 v5, 0x3727c5ac, v5")
e("  v_rsq_f32 v5, v5")
e("  s_nop 1")
for j in range(9): e(f"  v_mul_f32 v{10+j}, v{10+j}, v5")
e("  v_mul_f32 v6, v10, v20")
for j in range(1,9): e(f"  v_fmac_f32 v6, v{10+j}, v{20+j}")
wave_sum(6, 4)
e("  s_mul_i32 s52, s2, 2304")
e("  v_lshlrev_b32 v7, 2, v0")
e("  v_add_u32 v7, s52, v7")
for j in range(9):
    e(f"  buffer_store_dword v{10+j}, v7, s[40:43], 0 offen offset:{256*j}")
e("  s_lshl_b32 s53, s2, 2")
e("  v_mov_b32 v8, s53")
e("  buffer_store_dword v6, v8, s[44:47], 0 offen")
e("  s_waitcnt vmcnt(0)")
end("ka_kernel")

def matvec(name, grid, nrow_mul, K, a_off, a_bytes, a_row_bytes, w_ptr, w_cols, body_tail, ncol_blocks):
    pass

begin("kb_kernel", 2048*7, 256)
srd(32, 6, 576*1728*2)
ws_srd(40, QKV, 2048*1728*4)
e("  s_mov_b32 s50, 0x24924925")
e("  s_mul_hi_u32 s51, s2, s50")
e("  s_mul_i32 s52, s51, 7")
e("  s_sub_u32 s52, s2, s52")
e("  s_lshl_b32 s52, s52, 8")
e("  v_add_u32 v1, s52, v0")
e("  s_mul_i32 s53, s51, 2304")
e(f"  s_add_u32 s53, s53, {XN}")
e("  s_add_u32 s54, s22, s53")
e("  s_addc_u32 s55, s23, 0")
e("  v_lshlrev_b32 v2, 1, v1")
e("  v_mov_b32 v3, 0")
e("  s_mov_b32 s56, 0")
e("  s_movk_i32 s58, 1728")
e("  v_cmp_gt_u32 vcc, s58, v1")
e("  s_and_saveexec_b64 s[62:63], vcc")
e("  s_cbranch_execz kb_done")
e("kb_loop:")
e("  s_load_dwordx8 s[64:71], s[54:55], 0")
for j in range(8):
    e(f"  buffer_load_ushort v{10+j}, v2, s[32:35], 0 offen")
    e(f"  v_add_u32 v2, 3456, v2")
e("  s_waitcnt vmcnt(0) lgkmcnt(0)")
for j in range(8):
    e(f"  v_lshlrev_b32 v{10+j}, 16, v{10+j}")
    e(f"  v_fmac_f32 v3, s{64+j}, v{10+j}")
e("  s_add_u32 s54, s54, 32")
e("  s_addc_u32 s55, s55, 0")
e("  s_add_u32 s56, s56, 8")
e("  s_cmp_lt_u32 s56, 576")
e("  s_cbranch_scc1 kb_loop")
e("  s_mul_i32 s57, s51, 6912")
e("  v_lshlrev_b32 v4, 2, v1")
e("  v_add_u32 v4, s57, v4")
e("  buffer_store_dword v3, v4, s[40:43], 0 offen")
e("  s_waitcnt vmcnt(0)")
e("kb_done:")
end("kb_kernel")

begin("kc_kernel", 512, 256)
srd(32, 8, 32*18*18*2)
ws_srd(36, QKV, 2048*1728*4)
ws_srd(40, PHI, 2048*64*36*4)
e("  s_lshl_b32 s50, s2, 8")
e("  v_add_u32 v1, s50, v0")
e("  v_lshrrev_b32 v2, 6, v1")
e("  v_and_b32 v3, 63, v1")
e("  v_and_b32 v4, 31, v1")
e("  s_movk_i32 s51, 6912")
e("  v_mul_lo_u32 v5, v2, s51")
e("  v_mul_u32_u24 v6, 72, v3")
e("  v_add_u32 v5, v5, v6")
e("  v_mul_u32_u24 v7, 648, v4")
for d in range(18):
    e(f"  buffer_load_dword v{10+d}, v5, s[36:39], 0 offen offset:{4*d}")
e("  s_waitcnt vmcnt(0)")
for f in range(18): e(f"  v_mov_b32 v{30+f}, 0")
for d in range(18):
    for f in range(18):
        e(f"  buffer_load_ushort v{50+f}, v7, s[32:35], 0 offen offset:{(d*18+f)*2}")
    e("  s_waitcnt vmcnt(0)")
    for f in range(18):
        e(f"  v_lshlrev_b32 v{50+f}, 16, v{50+f}")
        e(f"  v_fmac_f32 v{30+f}, v{10+d}, v{50+f}")
e("  v_mov_b32 v8, v30")
e("  v_mov_b32 v9, v30")
for f in range(1,18):
    e(f"  v_max_f32 v8, v8, v{30+f}")
    e(f"  v_min_f32 v9, v9, v{30+f}")
e("  s_mov_b32 s52, 0x3fb8aa3b")
for f in range(18):
    e(f"  v_sub_f32 v{50+f}, v{30+f}, v8")
    e(f"  v_mul_f32 v{50+f}, s52, v{50+f}")
    e(f"  v_exp_f32 v{50+f}, v{50+f}")
    e(f"  v_sub_f32 v{70+f}, v9, v{30+f}")
    e(f"  v_mul_f32 v{70+f}, s52, v{70+f}")
    e(f"  v_exp_f32 v{70+f}, v{70+f}")
e("  s_nop 1")
e("  v_mov_b32 v8, v50")
e("  v_mov_b32 v9, v70")
for f in range(1,18):
    e(f"  v_add_f32 v8, v8, v{50+f}")
    e(f"  v_add_f32 v9, v9, v{70+f}")
e("  v_rcp_f32 v8, v8")
e("  v_rcp_f32 v9, v9")
e("  s_nop 1")
e("  v_mul_u32_u24 v6, 144, v1")
for f in range(18):
    e(f"  v_mul_f32 v{50+f}, v{50+f}, v8")
    e(f"  v_mul_f32 v{70+f}, v{70+f}, v9")
for f in range(18):
    e(f"  buffer_store_dword v{50+f}, v6, s[40:43], 0 offen offset:{4*f}")
    e(f"  buffer_store_dword v{70+f}, v6, s[40:43], 0 offen offset:{72+4*f}")
e("  s_waitcnt vmcnt(0)")
end("kc_kernel")

begin("kd_kernel", 86, 256)
ws_srd(32, PHI, 2048*64*36*4)
ws_srd(36, QKV, 2048*1728*4)
ws_srd(40, KV, 32*36*19*4)
e("  s_lshl_b32 s50, s2, 8")
e("  v_add_u32 v1, s50, v0")
e("  s_mov_b32 s51, 0x0d79435f")
e("  v_mul_hi_u32 v2, v1, s51")
e("  v_mul_u32_u24 v3, 19, v2")
e("  v_sub_u32 v3, v1, v3")
e("  s_mov_b32 s51, 0x071c71c8")
e("  v_mul_hi_u32 v4, v2, s51")
e("  v_lshlrev_b32 v5, 2, v2")
e("  v_add_u32 v5, 4608, v5")
e("  v_mul_u32_u24 v6, 18, v4")
e("  v_add_u32 v6, v6, v3")
e("  v_add_u32 v6, 1152, v6")
e("  v_lshlrev_b32 v6, 2, v6")
e("  v_cmp_eq_u32 s[62:63], 18, v3")
e("  v_mov_b32 v7, 0")
e("  s_mov_b32 s56, 0")
e("kd_loop:")
for j in range(8):
    e(f"  buffer_load_dword v{10+j}, v5, s[32:35], 0 offen")
    e(f"  buffer_load_dword v{20+j}, v6, s[36:39], 0 offen")
    e("  v_add_u32 v5, 9216, v5")
    e("  v_add_u32 v6, 6912, v6")
e("  s_waitcnt vmcnt(0)")
for j in range(8):
    e(f"  v_cndmask_b32 v{20+j}, v{20+j}, 1.0, s[62:63]")
    e(f"  v_fmac_f32 v7, v{10+j}, v{20+j}")
e("  s_add_u32 s56, s56, 8")
e("  s_cmp_lt_u32 s56, 2048")
e("  s_cbranch_scc1 kd_loop")
e("  v_lshlrev_b32 v8, 2, v1")
e("  buffer_store_dword v7, v8, s[40:43], 0 offen")
e("  s_waitcnt vmcnt(0)")
end("kd_kernel")

begin("ke0_kernel", 1, 64)
ws_srd(32, R, 2048*4)
ws_srd(36, IDX, 256)
e("  v_lshlrev_b32 v1, 2, v0")
e("  v_mov_b32 v2, 0xff800000")
e("  v_mov_b32 v3, 0")
e("  v_mov_b32 v4, v0")
for j in range(32):
    e(f"  buffer_load_dword v5, v1, s[32:35], 0 offen")
    e("  s_waitcnt vmcnt(0)")
    e("  v_cmp_gt_f32 vcc, v5, v2")
    e("  s_nop 1")
    e("  v_cndmask_b32 v2, v2, v5, vcc")
    e("  v_cndmask_b32 v3, v3, v4, vcc")
    e("  v_add_u32 v1, 256, v1")
    e("  v_add_u32 v4, 64, v4")
e("  s_nop 1")
e("  v_readlane_b32 s50, v2, 0")
e("  v_readlane_b32 s51, v3, 0")
e("  s_nop 3")
e("  v_mov_b32 v6, s50")
e("  v_mov_b32 v7, s51")
for l in range(1,64):
    e(f"  v_readlane_b32 s52, v2, {l}")
    e(f"  v_readlane_b32 s53, v3, {l}")
    e("  s_nop 3")
    e("  v_cmp_gt_f32 vcc, s52, v6")
    e("  v_mov_b32 v8, s52")
    e("  v_mov_b32 v9, s53")
    e("  v_cndmask_b32 v6, v6, v8, vcc")
    e("  v_cndmask_b32 v7, v7, v9, vcc")
e("  v_mov_b32 v10, 0")
e("  buffer_store_dword v7, v10, s[36:39], 0 offen")
e("  buffer_store_dword v6, v10, s[36:39], 0 offen offset:4")
e("  s_waitcnt vmcnt(0)")
end("ke0_kernel")

begin("ke1_kernel", 18, 256)
srd(32, 16, 576*4608*2)
srd(36, 18, 576*4608*2)
ws_srd(40, HH, 4608*4)
e(f"  s_add_u32 s50, s22, {IDX}")
e("  s_addc_u32 s51, s23, 0")
e("  s_load_dword s52, s[50:51], 0")
e("  s_waitcnt lgkmcnt(0)")
e("  s_and_b32 s52, s52, 2047")
e("  s_mul_i32 s53, s52, 2304")
e(f"  s_add_u32 s53, s53, {XN}")
e("  s_add_u32 s54, s22, s53")
e("  s_addc_u32 s55, s23, 0")
e("  s_lshl_b32 s57, s2, 8")
e("  v_add_u32 v1, s57, v0")
e("  v_lshlrev_b32 v2, 1, v1")
e("  v_mov_b32 v3, 0")
e("  v_mov_b32 v4, 0")
e("  s_mov_b32 s56, 0")
e("ke1_loop:")
e("  s_load_dwordx8 s[64:71], s[54:55], 0")
for j in range(8):
    e(f"  buffer_load_ushort v{10+j}, v2, s[32:35], 0 offen")
    e(f"  buffer_load_ushort v{20+j}, v2, s[36:39], 0 offen")
    e(f"  v_add_u32 v2, 9216, v2")
e("  s_waitcnt vmcnt(0) lgkmcnt(0)")
for j in range(8):
    e(f"  v_lshlrev_b32 v{10+j}, 16, v{10+j}")
    e(f"  v_lshlrev_b32 v{20+j}, 16, v{20+j}")
    e(f"  v_fmac_f32 v3, s{64+j}, v{10+j}")
    e(f"  v_fmac_f32 v4, s{64+j}, v{20+j}")
e("  s_add_u32 s54, s54, 32")
e("  s_addc_u32 s55, s55, 0")
e("  s_add_u32 s56, s56, 8")
e("  s_cmp_lt_u32 s56, 576")
e("  s_cbranch_scc1 ke1_loop")
e("  v_mul_f32 v5, 0xbfb8aa3b, v3")
e("  v_exp_f32 v5, v5")
e("  s_nop 1")
e("  v_add_f32 v5, 1.0, v5")
e("  v_rcp_f32 v5, v5")
e("  s_nop 1")
e("  v_mul_f32 v5, v5, v3")
e("  v_mul_f32 v5, v5, v4")
e("  v_lshlrev_b32 v6, 2, v1")
e("  buffer_store_dword v5, v6, s[40:43], 0 offen")
e("  s_waitcnt vmcnt(0)")
end("ke1_kernel")

begin("ke2_kernel", 9, 64)
srd(32, 20, 4608*576*2)
ws_srd(40, Y, 576*4)
e(f"  s_add_u32 s50, s22, {IDX}")
e("  s_addc_u32 s51, s23, 0")
e("  s_load_dword s52, s[50:51], 4")
e(f"  s_add_u32 s54, s22, {HH}")
e("  s_addc_u32 s55, s23, 0")
e("  s_lshl_b32 s57, s2, 6")
e("  v_add_u32 v1, s57, v0")
e("  v_lshlrev_b32 v2, 1, v1")
e("  v_mov_b32 v3, 0")
e("  s_mov_b32 s56, 0")
e("ke2_loop:")
e("  s_load_dwordx8 s[64:71], s[54:55], 0")
for j in range(8):
    e(f"  buffer_load_ushort v{10+j}, v2, s[32:35], 0 offen")
    e(f"  v_add_u32 v2, 1152, v2")
e("  s_waitcnt vmcnt(0) lgkmcnt(0)")
for j in range(8):
    e(f"  v_lshlrev_b32 v{10+j}, 16, v{10+j}")
    e(f"  v_fmac_f32 v3, s{64+j}, v{10+j}")
e("  s_add_u32 s54, s54, 32")
e("  s_addc_u32 s55, s55, 0")
e("  s_add_u32 s56, s56, 8")
e("  s_cmp_lt_u32 s56, 4608")
e("  s_cbranch_scc1 ke2_loop")
e("  v_mov_b32 v5, s52")
e("  v_mul_f32 v5, 0xbfb8aa3b, v5")
e("  v_exp_f32 v5, v5")
e("  s_nop 1")
e("  v_add_f32 v5, 1.0, v5")
e("  v_rcp_f32 v5, v5")
e("  s_nop 1")
e("  v_mul_f32 v3, v3, v5")
e("  v_lshlrev_b32 v6, 2, v1")
e("  buffer_store_dword v3, v6, s[40:43], 0 offen")
e("  s_waitcnt vmcnt(0)")
end("ke2_kernel")

begin("kf_kernel", 256, 256)
ws_srd(32, PHI, 2048*64*36*4)
ws_srd(36, KV, 32*36*19*4)
ws_srd(40, O, 2048*576*4)
e("  s_lshl_b32 s50, s2, 8")
e("  v_add_u32 v1, s50, v0")
e("  v_lshrrev_b32 v2, 5, v1")
e("  v_and_b32 v3, 31, v1")
e("  s_movk_i32 s51, 9216")
e("  v_mul_lo_u32 v4, v2, s51")
e("  v_mul_u32_u24 v5, 144, v3")
e("  v_add_u32 v4, v4, v5")
e("  v_mul_u32_u24 v6, 2736, v3")
for d in range(19): e(f"  v_mov_b32 v{30+d}, 0")
for f in range(36):
    e(f"  buffer_load_dword v10, v4, s[32:35], 0 offen offset:{4*f}")
    for d in range(19):
        e(f"  buffer_load_dword v{50+d}, v6, s[36:39], 0 offen offset:{(f*19+d)*4}")
    e("  s_waitcnt vmcnt(0)")
    for d in range(19):
        e(f"  v_fmac_f32 v{30+d}, v10, v{50+d}")
e("  v_add_f32 v48, 0x358637bd, v48")
e("  v_rcp_f32 v48, v48")
e("  s_nop 1")
e("  v_mul_u32_u24 v7, 72, v1")
for d in range(18):
    e(f"  v_mul_f32 v{30+d}, v{30+d}, v48")
for d in range(18):
    e(f"  buffer_store_dword v{30+d}, v7, s[40:43], 0 offen offset:{4*d}")
e("  s_waitcnt vmcnt(0)")
end("kf_kernel")

begin("kg_kernel", 2048*3, 192)
srd(32, 10, 576*576*2)
srd(36, 4, 2048*576*2)
ws_srd(40, XN, 2048*576*4)
ws_srd(44, Y, 576*4)
srd(48, 28, 2048*576*2)
e(f"  s_add_u32 s66, s22, {IDX}")
e("  s_addc_u32 s67, s23, 0")
e("  s_load_dword s59, s[66:67], 0")
e("  s_mov_b32 s52, 0x55555556")
e("  s_mul_hi_u32 s53, s2, s52")
e("  s_mul_i32 s52, s53, 3")
e("  s_sub_u32 s52, s2, s52")
e("  s_mul_i32 s52, s52, 192")
e("  v_add_u32 v1, s52, v0")
e("  s_mul_i32 s54, s53, 2304")
e(f"  s_add_u32 s55, s54, {O}")
e("  s_add_u32 s60, s22, s55")
e("  s_addc_u32 s61, s23, 0")
e("  v_lshlrev_b32 v2, 1, v1")
e("  v_mov_b32 v3, 0")
e("  s_mov_b32 s56, 0")
e("  s_waitcnt lgkmcnt(0)")
e("kg_loop:")
e("  s_load_dwordx8 s[64:71], s[60:61], 0")
for j in range(8):
    e(f"  buffer_load_ushort v{10+j}, v2, s[32:35], 0 offen")
    e(f"  v_add_u32 v2, 1152, v2")
e("  s_waitcnt vmcnt(0) lgkmcnt(0)")
for j in range(8):
    e(f"  v_lshlrev_b32 v{10+j}, 16, v{10+j}")
    e(f"  v_fmac_f32 v3, s{64+j}, v{10+j}")
e("  s_add_u32 s60, s60, 32")
e("  s_addc_u32 s61, s61, 0")
e("  s_add_u32 s56, s56, 8")
e("  s_cmp_lt_u32 s56, 576")
e("  s_cbranch_scc1 kg_loop")
e("  s_mul_i32 s57, s53, 1152")
e("  v_lshlrev_b32 v4, 1, v1")
e("  v_add_u32 v4, s57, v4")
e("  v_lshlrev_b32 v5, 2, v1")
e("  v_add_u32 v6, s54, v5")
e("  buffer_load_ushort v10, v4, s[36:39], 0 offen")
e("  buffer_load_dword v11, v6, s[40:43], 0 offen")
e("  buffer_load_dword v12, v5, s[44:47], 0 offen")
e("  s_waitcnt vmcnt(0)")
e("  v_lshlrev_b32 v10, 16, v10")
e("  v_add_f32 v3, v3, v10")
e("  v_add_f32 v3, v3, v11")
e("  s_cmp_eq_u32 s59, s53")
e("  s_cbranch_scc0 kg_noy")
e("  v_add_f32 v3, v3, v12")
e("kg_noy:")
e("  v_cvt_pk_bf16_f32 v3, v3, v3")
e("  buffer_store_short v3, v4, s[48:51], 0 offen")
e("  s_waitcnt vmcnt(0)")
end("kg_kernel")

for i in range(extra_empty):
    begin(f"empty{i}_kernel", 256, 256)
    end(f"empty{i}_kernel")

e('.section .rodata,"a"')
for (name, grid, block, lds) in kernels:
    e(".p2align 6")
    e(f".amdhsa_kernel {name}")
    e("  .amdhsa_next_free_vgpr 96")
    e("  .amdhsa_next_free_sgpr 80")
    e("  .amdhsa_accum_offset 96")
    e("  .amdhsa_group_segment_fixed_size 0")
    e("  .amdhsa_kernarg_size 96")
    e("  .amdhsa_user_sgpr_count 2")
    e("  .amdhsa_user_sgpr_kernarg_segment_ptr 1")
    e("  .amdhsa_system_sgpr_workgroup_id_x 1")
    e(".end_amdhsa_kernel")

hdr = [f"; @launch kernel={n} grid=({g},1,1) block=({b},1,1) lds={l}" for (n,g,b,l) in kernels]
open(sys.argv[1], "w").write("\n".join(hdr + out) + "\n")
```

```python
import sys
NAME = "parallel_sum__linear_kernel_hedgehog__moe_arch_mod__prompt"
extra_empty = int(sys.argv[2]) if len(sys.argv) > 2 else 0
PROBE = int(sys.argv[3]) if len(sys.argv) > 3 else 0
PSTRIDE = int(sys.argv[4]) if len(sys.argv) > 4 else 20480

XN   = 0
R    = XN + 2048*576*4
QKV  = R + 2048*4
PHI  = QKV + 2048*1728*4
KV   = PHI + 2048*64*36*4
IDX  = KV + 32*36*19*4
HH   = IDX + 256
Y    = HH + 4608*4
O    = Y + 576*4
WSEND= O + 2048*576*4

out = []
def e(s): out.append(s)

def srd(base, ptr, nbytes):
    e(f"  s_mov_b32 s{base}, s{ptr}")
    e(f"  s_mov_b32 s{base+1}, s{ptr+1}")
    e(f"  s_mov_b32 s{base+2}, {nbytes}")
    e(f"  s_mov_b32 s{base+3}, 0x00020000")

def ws_srd(base, off, nbytes):
    e(f"  s_add_u32 s{base}, s22, {off}")
    e(f"  s_addc_u32 s{base+1}, s23, 0")
    e(f"  s_mov_b32 s{base+2}, {nbytes}")
    e(f"  s_mov_b32 s{base+3}, 0x00020000")

kernels = []
def begin(name, grid, block, lds=0):
    kernels.append((name, grid, block, lds))
    e(f".globl {name}")
    e(".p2align 8")
    e(f".type {name},@function")
    e(f"{name}:")
    e(f"  s_cmp_ge_u32 s2, {grid}")
    e(f"  s_cbranch_scc1 {name}_end")
    e("  s_load_dwordx16 s[4:19], s[0:1], 0")
    e("  s_load_dwordx4 s[20:23], s[0:1], 64")
    e("  s_load_dwordx2 s[24:25], s[0:1], 80")
    e("  s_load_dwordx2 s[26:27], s[0:1], 88")
    e("  s_waitcnt lgkmcnt(0)")
    e("  s_mov_b32 s28, s22")
    e("  s_mov_b32 s29, s23")
    e("  s_mov_b32 s22, s26")
    e("  s_mov_b32 s23, s27")
def end(name):
    e(f"{name}_end:")
    e("  s_endpgm")

def wave_sum(v, tmp):
    for off in (0x041F,0x081F,0x101F,0x201F,0x401F):
        e(f"  ds_swizzle_b32 v{tmp}, v{v} offset:{off}")
        e("  s_waitcnt lgkmcnt(0)")
        e(f"  v_add_f32 v{v}, v{v}, v{tmp}")
    e("  s_nop 1")
    e(f"  v_readlane_b32 s60, v{v}, 0")
    e(f"  v_readlane_b32 s61, v{v}, 32")
    e("  s_nop 3")
    e(f"  v_mov_b32 v{v}, s60")
    e(f"  v_add_f32 v{v}, s61, v{v}")

e(".amdgcn_target \"amdgcn-amd-amdhsa--gfx950\"")
e(".text")


if PROBE:
    begin("probe_kernel", 1, 64)
    srd(32, 16, 576*4608*2)
    e("  v_mov_b32 v1, 0")
    e("  s_mov_b32 s50, 0")
    e("probe_loop:")
    e("  buffer_load_dword v2, v1, s[32:35], 0 offen")
    e("  s_waitcnt vmcnt(0)")
    e("  v_and_b32 v2, 0, v2")
    e("  v_add_u32 v1, v1, v2")
    e(f"  v_add_u32 v1, {PSTRIDE}, v1")
    e("  s_add_u32 s50, s50, 1")
    e(f"  s_cmp_lt_u32 s50, {PROBE}")
    e("  s_cbranch_scc1 probe_loop")
    end("probe_kernel")

begin("ka_kernel", 2048, 64)
srd(32, 4, 2048*576*2)
srd(36, 14, 576*2)
ws_srd(40, XN, 2048*576*4)
ws_srd(44, R, 2048*4)
e("  s_mul_i32 s50, s2, 1152")
e("  v_lshlrev_b32 v1, 1, v0")
e("  v_add_u32 v2, s50, v1")
for j in range(9):
    e(f"  buffer_load_ushort v{10+j}, v2, s[32:35], 0 offen offset:{128*j}")
    e(f"  buffer_load_ushort v{20+j}, v1, s[36:39], 0 offen offset:{128*j}")
e("  s_waitcnt vmcnt(0)")
for j in range(9):
    e(f"  v_lshlrev_b32 v{10+j}, 16, v{10+j}")
    e(f"  v_lshlrev_b32 v{20+j}, 16, v{20+j}")
e("  v_mov_b32 v3, v10")
for j in range(1,9): e(f"  v_add_f32 v3, v3, v{10+j}")
wave_sum(3, 4)
e("  s_mov_b32 s51, 0x3ae38e39")
e("  v_mul_f32 v3, s51, v3")
for j in range(9): e(f"  v_sub_f32 v{10+j}, v{10+j}, v3")
e("  v_mul_f32 v5, v10, v10")
for j in range(1,9): e(f"  v_fmac_f32 v5, v{10+j}, v{10+j}")
wave_sum(5, 4)
e("  v_mul_f32 v5, s51, v5")
e("  v_add_f32 v5, 0x3727c5ac, v5")
e("  v_rsq_f32 v5, v5")
e("  s_nop 1")
for j in range(9): e(f"  v_mul_f32 v{10+j}, v{10+j}, v5")
e("  v_mul_f32 v6, v10, v20")
for j in range(1,9): e(f"  v_fmac_f32 v6, v{10+j}, v{20+j}")
wave_sum(6, 4)
e("  s_mul_i32 s52, s2, 2304")
e("  v_lshlrev_b32 v7, 2, v0")
e("  v_add_u32 v7, s52, v7")
for j in range(9):
    e(f"  buffer_store_dword v{10+j}, v7, s[40:43], 0 offen offset:{256*j}")
e("  s_lshl_b32 s53, s2, 2")
e("  v_mov_b32 v8, s53")
e("  buffer_store_dword v6, v8, s[44:47], 0 offen")
e("  s_waitcnt vmcnt(0)")
end("ka_kernel")

def matvec(name, grid, nrow_mul, K, a_off, a_bytes, a_row_bytes, w_ptr, w_cols, body_tail, ncol_blocks):
    pass

begin("kb_kernel", 2048*7, 256)
srd(32, 6, 576*1728*2)
ws_srd(40, QKV, 2048*1728*4)
e("  s_mov_b32 s50, 0x24924925")
e("  s_mul_hi_u32 s51, s2, s50")
e("  s_mul_i32 s52, s51, 7")
e("  s_sub_u32 s52, s2, s52")
e("  s_lshl_b32 s52, s52, 8")
e("  v_add_u32 v1, s52, v0")
e("  s_mul_i32 s53, s51, 2304")
e(f"  s_add_u32 s53, s53, {XN}")
e("  s_add_u32 s54, s22, s53")
e("  s_addc_u32 s55, s23, 0")
e("  v_lshlrev_b32 v2, 1, v1")
e("  v_mov_b32 v3, 0")
e("  s_mov_b32 s56, 0")
e("  s_movk_i32 s58, 1728")
e("  v_cmp_gt_u32 vcc, s58, v1")
e("  s_and_saveexec_b64 s[62:63], vcc")
e("  s_cbranch_execz kb_done")
e("kb_loop:")
e("  s_load_dwordx8 s[64:71], s[54:55], 0")
for j in range(8):
    e(f"  buffer_load_ushort v{10+j}, v2, s[32:35], 0 offen")
    e(f"  v_add_u32 v2, 3456, v2")
e("  s_waitcnt vmcnt(0) lgkmcnt(0)")
for j in range(8):
    e(f"  v_lshlrev_b32 v{10+j}, 16, v{10+j}")
    e(f"  v_fmac_f32 v3, s{64+j}, v{10+j}")
e("  s_add_u32 s54, s54, 32")
e("  s_addc_u32 s55, s55, 0")
e("  s_add_u32 s56, s56, 8")
e("  s_cmp_lt_u32 s56, 576")
e("  s_cbranch_scc1 kb_loop")
e("  s_mul_i32 s57, s51, 6912")
e("  v_lshlrev_b32 v4, 2, v1")
e("  v_add_u32 v4, s57, v4")
e("  buffer_store_dword v3, v4, s[40:43], 0 offen")
e("  s_waitcnt vmcnt(0)")
e("kb_done:")
end("kb_kernel")

begin("kc_kernel", 512, 256)
srd(32, 8, 32*18*18*2)
ws_srd(36, QKV, 2048*1728*4)
ws_srd(40, PHI, 2048*64*36*4)
e("  s_lshl_b32 s50, s2, 8")
e("  v_add_u32 v1, s50, v0")
e("  v_lshrrev_b32 v2, 6, v1")
e("  v_and_b32 v3, 63, v1")
e("  v_and_b32 v4, 31, v1")
e("  s_movk_i32 s51, 6912")
e("  v_mul_lo_u32 v5, v2, s51")
e("  v_mul_u32_u24 v6, 72, v3")
e("  v_add_u32 v5, v5, v6")
e("  v_mul_u32_u24 v7, 648, v4")
for d in range(18):
    e(f"  buffer_load_dword v{10+d}, v5, s[36:39], 0 offen offset:{4*d}")
e("  s_waitcnt vmcnt(0)")
for f in range(18): e(f"  v_mov_b32 v{30+f}, 0")
for d in range(18):
    for f in range(18):
        e(f"  buffer_load_ushort v{50+f}, v7, s[32:35], 0 offen offset:{(d*18+f)*2}")
    e("  s_waitcnt vmcnt(0)")
    for f in range(18):
        e(f"  v_lshlrev_b32 v{50+f}, 16, v{50+f}")
        e(f"  v_fmac_f32 v{30+f}, v{10+d}, v{50+f}")
e("  v_mov_b32 v8, v30")
e("  v_mov_b32 v9, v30")
for f in range(1,18):
    e(f"  v_max_f32 v8, v8, v{30+f}")
    e(f"  v_min_f32 v9, v9, v{30+f}")
e("  s_mov_b32 s52, 0x3fb8aa3b")
for f in range(18):
    e(f"  v_sub_f32 v{50+f}, v{30+f}, v8")
    e(f"  v_mul_f32 v{50+f}, s52, v{50+f}")
    e(f"  v_exp_f32 v{50+f}, v{50+f}")
    e(f"  v_sub_f32 v{70+f}, v9, v{30+f}")
    e(f"  v_mul_f32 v{70+f}, s52, v{70+f}")
    e(f"  v_exp_f32 v{70+f}, v{70+f}")
e("  s_nop 1")
e("  v_mov_b32 v8, v50")
e("  v_mov_b32 v9, v70")
for f in range(1,18):
    e(f"  v_add_f32 v8, v8, v{50+f}")
    e(f"  v_add_f32 v9, v9, v{70+f}")
e("  v_rcp_f32 v8, v8")
e("  v_rcp_f32 v9, v9")
e("  s_nop 1")
e("  v_mul_u32_u24 v6, 144, v1")
for f in range(18):
    e(f"  v_mul_f32 v{50+f}, v{50+f}, v8")
    e(f"  v_mul_f32 v{70+f}, v{70+f}, v9")
for f in range(18):
    e(f"  buffer_store_dword v{50+f}, v6, s[40:43], 0 offen offset:{4*f}")
    e(f"  buffer_store_dword v{70+f}, v6, s[40:43], 0 offen offset:{72+4*f}")
e("  s_waitcnt vmcnt(0)")
end("kc_kernel")

begin("kd_kernel", 86, 256)
ws_srd(32, PHI, 2048*64*36*4)
ws_srd(36, QKV, 2048*1728*4)
ws_srd(40, KV, 32*36*19*4)
e("  s_lshl_b32 s50, s2, 8")
e("  v_add_u32 v1, s50, v0")
e("  s_mov_b32 s51, 0x0d79435f")
e("  v_mul_hi_u32 v2, v1, s51")
e("  v_mul_u32_u24 v3, 19, v2")
e("  v_sub_u32 v3, v1, v3")
e("  s_mov_b32 s51, 0x071c71c8")
e("  v_mul_hi_u32 v4, v2, s51")
e("  v_lshlrev_b32 v5, 2, v2")
e("  v_add_u32 v5, 4608, v5")
e("  v_mul_u32_u24 v6, 18, v4")
e("  v_add_u32 v6, v6, v3")
e("  v_add_u32 v6, 1152, v6")
e("  v_lshlrev_b32 v6, 2, v6")
e("  v_cmp_eq_u32 s[62:63], 18, v3")
e("  v_mov_b32 v7, 0")
e("  s_mov_b32 s56, 0")
e("kd_loop:")
for j in range(8):
    e(f"  buffer_load_dword v{10+j}, v5, s[32:35], 0 offen")
    e(f"  buffer_load_dword v{20+j}, v6, s[36:39], 0 offen")
    e("  v_add_u32 v5, 9216, v5")
    e("  v_add_u32 v6, 6912, v6")
e("  s_waitcnt vmcnt(0)")
for j in range(8):
    e(f"  v_cndmask_b32 v{20+j}, v{20+j}, 1.0, s[62:63]")
    e(f"  v_fmac_f32 v7, v{10+j}, v{20+j}")
e("  s_add_u32 s56, s56, 8")
e("  s_cmp_lt_u32 s56, 2048")
e("  s_cbranch_scc1 kd_loop")
e("  v_lshlrev_b32 v8, 2, v1")
e("  buffer_store_dword v7, v8, s[40:43], 0 offen")
e("  s_waitcnt vmcnt(0)")
end("kd_kernel")

begin("ke0_kernel", 1, 64)
ws_srd(32, R, 2048*4)
ws_srd(36, IDX, 256)
e("  v_lshlrev_b32 v1, 2, v0")
e("  v_mov_b32 v2, 0xff800000")
e("  v_mov_b32 v3, 0")
e("  v_mov_b32 v4, v0")
for j in range(32):
    e(f"  buffer_load_dword v5, v1, s[32:35], 0 offen")
    e("  s_waitcnt vmcnt(0)")
    e("  v_cmp_gt_f32 vcc, v5, v2")
    e("  s_nop 1")
    e("  v_cndmask_b32 v2, v2, v5, vcc")
    e("  v_cndmask_b32 v3, v3, v4, vcc")
    e("  v_add_u32 v1, 256, v1")
    e("  v_add_u32 v4, 64, v4")
e("  s_nop 1")
e("  v_readlane_b32 s50, v2, 0")
e("  v_readlane_b32 s51, v3, 0")
e("  s_nop 3")
e("  v_mov_b32 v6, s50")
e("  v_mov_b32 v7, s51")
for l in range(1,64):
    e(f"  v_readlane_b32 s52, v2, {l}")
    e(f"  v_readlane_b32 s53, v3, {l}")
    e("  s_nop 3")
    e("  v_cmp_gt_f32 vcc, s52, v6")
    e("  v_mov_b32 v8, s52")
    e("  v_mov_b32 v9, s53")
    e("  v_cndmask_b32 v6, v6, v8, vcc")
    e("  v_cndmask_b32 v7, v7, v9, vcc")
e("  v_mov_b32 v10, 0")
e("  buffer_store_dword v7, v10, s[36:39], 0 offen")
e("  buffer_store_dword v6, v10, s[36:39], 0 offen offset:4")
e("  s_waitcnt vmcnt(0)")
end("ke0_kernel")

begin("ke1_kernel", 18, 256)
srd(32, 16, 576*4608*2)
srd(36, 18, 576*4608*2)
ws_srd(40, HH, 4608*4)
e(f"  s_add_u32 s50, s22, {IDX}")
e("  s_addc_u32 s51, s23, 0")
e("  s_load_dword s52, s[50:51], 0")
e("  s_waitcnt lgkmcnt(0)")
e("  s_and_b32 s52, s52, 2047")
e("  s_mul_i32 s53, s52, 2304")
e(f"  s_add_u32 s53, s53, {XN}")
e("  s_add_u32 s54, s22, s53")
e("  s_addc_u32 s55, s23, 0")
e("  s_lshl_b32 s57, s2, 8")
e("  v_add_u32 v1, s57, v0")
e("  v_lshlrev_b32 v2, 1, v1")
e("  v_mov_b32 v3, 0")
e("  v_mov_b32 v4, 0")
e("  s_mov_b32 s56, 0")
e("ke1_loop:")
e("  s_load_dwordx8 s[64:71], s[54:55], 0")
for j in range(8):
    e(f"  buffer_load_ushort v{10+j}, v2, s[32:35], 0 offen")
    e(f"  buffer_load_ushort v{20+j}, v2, s[36:39], 0 offen")
    e(f"  v_add_u32 v2, 9216, v2")
e("  s_waitcnt vmcnt(0) lgkmcnt(0)")
for j in range(8):
    e(f"  v_lshlrev_b32 v{10+j}, 16, v{10+j}")
    e(f"  v_lshlrev_b32 v{20+j}, 16, v{20+j}")
    e(f"  v_fmac_f32 v3, s{64+j}, v{10+j}")
    e(f"  v_fmac_f32 v4, s{64+j}, v{20+j}")
e("  s_add_u32 s54, s54, 32")
e("  s_addc_u32 s55, s55, 0")
e("  s_add_u32 s56, s56, 8")
e("  s_cmp_lt_u32 s56, 576")
e("  s_cbranch_scc1 ke1_loop")
e("  v_mul_f32 v5, 0xbfb8aa3b, v3")
e("  v_exp_f32 v5, v5")
e("  s_nop 1")
e("  v_add_f32 v5, 1.0, v5")
e("  v_rcp_f32 v5, v5")
e("  s_nop 1")
e("  v_mul_f32 v5, v5, v3")
e("  v_mul_f32 v5, v5, v4")
e("  v_lshlrev_b32 v6, 2, v1")
e("  buffer_store_dword v5, v6, s[40:43], 0 offen")
e("  s_waitcnt vmcnt(0)")
end("ke1_kernel")

begin("ke2_kernel", 9, 64)
srd(32, 20, 4608*576*2)
ws_srd(40, Y, 576*4)
e(f"  s_add_u32 s50, s22, {IDX}")
e("  s_addc_u32 s51, s23, 0")
e("  s_load_dword s52, s[50:51], 4")
e(f"  s_add_u32 s54, s22, {HH}")
e("  s_addc_u32 s55, s23, 0")
e("  s_lshl_b32 s57, s2, 6")
e("  v_add_u32 v1, s57, v0")
e("  v_lshlrev_b32 v2, 1, v1")
e("  v_mov_b32 v3, 0")
e("  s_mov_b32 s56, 0")
e("ke2_loop:")
e("  s_load_dwordx8 s[64:71], s[54:55], 0")
for j in range(8):
    e(f"  buffer_load_ushort v{10+j}, v2, s[32:35], 0 offen")
    e(f"  v_add_u32 v2, 1152, v2")
e("  s_waitcnt vmcnt(0) lgkmcnt(0)")
for j in range(8):
    e(f"  v_lshlrev_b32 v{10+j}, 16, v{10+j}")
    e(f"  v_fmac_f32 v3, s{64+j}, v{10+j}")
e("  s_add_u32 s54, s54, 32")
e("  s_addc_u32 s55, s55, 0")
e("  s_add_u32 s56, s56, 8")
e("  s_cmp_lt_u32 s56, 4608")
e("  s_cbranch_scc1 ke2_loop")
e("  v_mov_b32 v5, s52")
e("  v_mul_f32 v5, 0xbfb8aa3b, v5")
e("  v_exp_f32 v5, v5")
e("  s_nop 1")
e("  v_add_f32 v5, 1.0, v5")
e("  v_rcp_f32 v5, v5")
e("  s_nop 1")
e("  v_mul_f32 v3, v3, v5")
e("  v_lshlrev_b32 v6, 2, v1")
e("  buffer_store_dword v3, v6, s[40:43], 0 offen")
e("  s_waitcnt vmcnt(0)")
end("ke2_kernel")

begin("kf_kernel", 256, 256)
ws_srd(32, PHI, 2048*64*36*4)
ws_srd(36, KV, 32*36*19*4)
ws_srd(40, O, 2048*576*4)
e("  s_lshl_b32 s50, s2, 8")
e("  v_add_u32 v1, s50, v0")
e("  v_lshrrev_b32 v2, 5, v1")
e("  v_and_b32 v3, 31, v1")
e("  s_movk_i32 s51, 9216")
e("  v_mul_lo_u32 v4, v2, s51")
e("  v_mul_u32_u24 v5, 144, v3")
e("  v_add_u32 v4, v4, v5")
e("  v_mul_u32_u24 v6, 2736, v3")
for d in range(19): e(f"  v_mov_b32 v{30+d}, 0")
for f in range(36):
    e(f"  buffer_load_dword v10, v4, s[32:35], 0 offen offset:{4*f}")
    for d in range(19):
        e(f"  buffer_load_dword v{50+d}, v6, s[36:39], 0 offen offset:{(f*19+d)*4}")
    e("  s_waitcnt vmcnt(0)")
    for d in range(19):
        e(f"  v_fmac_f32 v{30+d}, v10, v{50+d}")
e("  v_add_f32 v48, 0x358637bd, v48")
e("  v_rcp_f32 v48, v48")
e("  s_nop 1")
e("  v_mul_u32_u24 v7, 72, v1")
for d in range(18):
    e(f"  v_mul_f32 v{30+d}, v{30+d}, v48")
for d in range(18):
    e(f"  buffer_store_dword v{30+d}, v7, s[40:43], 0 offen offset:{4*d}")
e("  s_waitcnt vmcnt(0)")
end("kf_kernel")

begin("kg_kernel", 2048*3, 192)
srd(32, 10, 576*576*2)
srd(36, 4, 2048*576*2)
ws_srd(40, XN, 2048*576*4)
ws_srd(44, Y, 576*4)
srd(48, 28, 2048*576*2)
e(f"  s_add_u32 s66, s22, {IDX}")
e("  s_addc_u32 s67, s23, 0")
e("  s_load_dword s59, s[66:67], 0")
e("  s_mov_b32 s52, 0x55555556")
e("  s_mul_hi_u32 s53, s2, s52")
e("  s_mul_i32 s52, s53, 3")
e("  s_sub_u32 s52, s2, s52")
e("  s_mul_i32 s52, s52, 192")
e("  v_add_u32 v1, s52, v0")
e("  s_mul_i32 s54, s53, 2304")
e(f"  s_add_u32 s55, s54, {O}")
e("  s_add_u32 s60, s22, s55")
e("  s_addc_u32 s61, s23, 0")
e("  v_lshlrev_b32 v2, 1, v1")
e("  v_mov_b32 v3, 0")
e("  s_mov_b32 s56, 0")
e("  s_waitcnt lgkmcnt(0)")
e("kg_loop:")
e("  s_load_dwordx8 s[64:71], s[60:61], 0")
for j in range(8):
    e(f"  buffer_load_ushort v{10+j}, v2, s[32:35], 0 offen")
    e(f"  v_add_u32 v2, 1152, v2")
e("  s_waitcnt vmcnt(0) lgkmcnt(0)")
for j in range(8):
    e(f"  v_lshlrev_b32 v{10+j}, 16, v{10+j}")
    e(f"  v_fmac_f32 v3, s{64+j}, v{10+j}")
e("  s_add_u32 s60, s60, 32")
e("  s_addc_u32 s61, s61, 0")
e("  s_add_u32 s56, s56, 8")
e("  s_cmp_lt_u32 s56, 576")
e("  s_cbranch_scc1 kg_loop")
e("  s_mul_i32 s57, s53, 1152")
e("  v_lshlrev_b32 v4, 1, v1")
e("  v_add_u32 v4, s57, v4")
e("  v_lshlrev_b32 v5, 2, v1")
e("  v_add_u32 v6, s54, v5")
e("  buffer_load_ushort v10, v4, s[36:39], 0 offen")
e("  buffer_load_dword v11, v6, s[40:43], 0 offen")
e("  buffer_load_dword v12, v5, s[44:47], 0 offen")
e("  s_waitcnt vmcnt(0)")
e("  v_lshlrev_b32 v10, 16, v10")
e("  v_add_f32 v3, v3, v10")
e("  v_add_f32 v3, v3, v11")
e("  s_cmp_eq_u32 s59, s53")
e("  s_cbranch_scc0 kg_noy")
e("  v_add_f32 v3, v3, v12")
e("kg_noy:")
e("  v_cvt_pk_bf16_f32 v3, v3, v3")
e("  buffer_store_short v3, v4, s[48:51], 0 offen")
e("  s_waitcnt vmcnt(0)")
end("kg_kernel")

for i in range(extra_empty):
    begin(f"empty{i}_kernel", 256, 256)
    end(f"empty{i}_kernel")

e('.section .rodata,"a"')
for (name, grid, block, lds) in kernels:
    e(".p2align 6")
    e(f".amdhsa_kernel {name}")
    e("  .amdhsa_next_free_vgpr 96")
    e("  .amdhsa_next_free_sgpr 80")
    e("  .amdhsa_accum_offset 96")
    e("  .amdhsa_group_segment_fixed_size 0")
    e("  .amdhsa_kernarg_size 96")
    e("  .amdhsa_user_sgpr_count 2")
    e("  .amdhsa_user_sgpr_kernarg_segment_ptr 1")
    e("  .amdhsa_system_sgpr_workgroup_id_x 1")
    e(".end_amdhsa_kernel")

hdr = [f"; @launch kernel={n} grid=({g},1,1) block=({b},1,1) lds={l}" for (n,g,b,l) in kernels]
open(sys.argv[1], "w").write("\n".join(hdr + out) + "\n")
```
